```python
import torch

def _softmax(x, axis=-1):
    return torch.softmax(x, dim=axis)
def _gelu(x):
    return torch.nn.functional.gelu(x, approximate="tanh")
def _silu(x):
    return torch.nn.functional.silu(x)
def _sigmoid(x):
    return torch.sigmoid(x)
def _layernorm(x, axis=-1, eps=1e-5):
    m = x.mean(dim=axis, keepdim=True)
    v = x.var(dim=axis, keepdim=True, unbiased=False)
    return (x - m) / torch.sqrt(v + eps)
def _scatter_add(tgt, idx, src, axis=0):
    return tgt.clone().index_add_(axis, idx, src)
def _segment_sum(src, seg, n):
    out = torch.zeros((n,) + src.shape[1:], dtype=src.dtype)
    return out.index_add_(0, seg, src)
def _pad(x, pw):
    flat = tuple(v for pair in reversed(pw) for v in pair)
    return torch.nn.functional.pad(x, flat)

kernel_name = 'concat_heads__mha_block_cached__mha_block_cached__near_ridge'

def setup_inputs():

    _w = (lambda a: (lambda t: t.to(torch.bfloat16) if t.is_floating_point() else t)(torch.as_tensor(a)))
    def _A_setup():
        B, Sq, D = 8, 240, 1024
        H, Sk, Dh = 32, 1024, 128
        return {
            "x": _w((lambda *s: torch.randn(*s, dtype=torch.bfloat16) * 0.8)(B, Sq, D)),
            "k_cache": _w((lambda *s: torch.randn(*s, dtype=torch.bfloat16) * 0.8)(B, H, Sk, Dh)),
            "v_cache": _w((lambda *s: torch.randn(*s, dtype=torch.bfloat16) * 0.05)(B, H, Sk, Dh)),
            "wq": _w((lambda *s: torch.randn(*s, dtype=torch.bfloat16) * 0.8)(D, H * Dh) * (D ** -0.5)),
            "wo": _w((lambda *s: torch.randn(*s, dtype=torch.bfloat16) * 0.05)(H * Dh, D) * ((H * Dh) ** -0.5)),
        }
    _A_in = _A_setup()

    def _B_setup():
        B, Sq, D = 8, 240, 1024
        H, Sk, Dh = 32, 1024, 128
        return {
            "x": _w((lambda *s: torch.randn(*s, dtype=torch.bfloat16) * 0.8)(B, Sq, D)),
            "k_cache": _w((lambda *s: torch.randn(*s, dtype=torch.bfloat16) * 0.8)(B, H, Sk, Dh)),
            "v_cache": _w((lambda *s: torch.randn(*s, dtype=torch.bfloat16) * 0.05)(B, H, Sk, Dh)),
            "wq": _w((lambda *s: torch.randn(*s, dtype=torch.bfloat16) * 0.8)(D, H * Dh) * (D ** -0.5)),
            "wo": _w((lambda *s: torch.randn(*s, dtype=torch.bfloat16) * 0.05)(H * Dh, D) * ((H * Dh) ** -0.5)),
        }
    _B_in = _B_setup()

    return {
        "A_x": _A_in["x"],
        "A_k_cache": _A_in["k_cache"],
        "A_v_cache": _A_in["v_cache"],
        "A_wq": _A_in["wq"],
        "A_wo": _A_in["wo"],
        "B_x": _B_in["x"],
        "B_k_cache": _B_in["k_cache"],
        "B_v_cache": _B_in["v_cache"],
        "B_wq": _B_in["wq"],
        "B_wo": _B_in["wo"],
    }

def reference(A_x, A_k_cache, A_v_cache, A_wq, A_wo, B_x, B_k_cache, B_v_cache, B_wq, B_wo):
    def _A_ref(x, k_cache, v_cache, wq, wo):
        B, Sq, D = x.shape
        H, Dh = 32, 128
        q = (lambda x, *d: x.permute(*d))((x @ wq).reshape(B, Sq, H, Dh), 0, 2, 1, 3)
        scores = torch.einsum("bhqd,bhkd->bhqk", q, k_cache) * (Dh ** -0.5)
        p = _softmax(scores, axis=-1)
        o = torch.einsum("bhqk,bhkd->bhqd", p, v_cache)
        return (lambda x, *d: x.permute(*d))(o, 0, 2, 1, 3).reshape(B, Sq, H * Dh) @ wo

    def _B_ref(x, k_cache, v_cache, wq, wo):
        B, Sq, D = x.shape
        H, Dh = 32, 128
        q = (lambda x, *d: x.permute(*d))((x @ wq).reshape(B, Sq, H, Dh), 0, 2, 1, 3)
        scores = torch.einsum("bhqd,bhkd->bhqk", q, k_cache) * (Dh ** -0.5)
        p = _softmax(scores, axis=-1)
        o = torch.einsum("bhqk,bhkd->bhqd", p, v_cache)
        return (lambda x, *d: x.permute(*d))(o, 0, 2, 1, 3).reshape(B, Sq, H * Dh) @ wo

    a = _A_ref(A_x, A_k_cache, A_v_cache, A_wq, A_wo)
    b = _B_ref(B_x, B_k_cache, B_v_cache, B_wq, B_wo)
    return torch.concatenate([a, b], axis=-1)
```

```python
import sys
sys.path.insert(0, "dev")
def gen(D, NB, nt, nwg=256):
    npieces = NB // 4096
    s = []
    a = s.append
    a("; @launch grid=(%d,1,1) block=(256,1,1) lds=163840" % nwg)
    a('.amdgcn_target "amdgcn-amd-amdhsa--gfx950"')
    a(".text\n.globl bs_kernel\n.p2align 8\n.type bs_kernel,@function\nbs_kernel:")
    a("s_cmp_ge_u32 s2, %d" % nwg); a("s_cbranch_scc1 L_end")
    a("s_load_dwordx2 s[4:5], s[0:1], 0")
    a("s_load_dwordx2 s[6:7], s[0:1], 8")
    a("v_lshrrev_b32 v1, 6, v0")
    a("s_nop 0")
    a("v_readfirstlane_b32 s20, v1")
    a("v_and_b32 v2, 63, v0")
    a("v_lshlrev_b32 v2, 4, v2")
    a("s_waitcnt lgkmcnt(0)")
    a("s_memrealtime s[24:25]")
    a("s_memtime s[28:29]")
    a("s_mul_i32 s12, s2, %d" % NB)
    a("s_mul_hi_u32 s13, s2, %d" % NB)
    a("s_add_u32 s8, s4, s12"); a("s_addc_u32 s9, s5, s13")
    a("s_mov_b32 s10, %d" % NB); a("s_mov_b32 s11, 0x20000")
    a("s_lshl_b32 s14, s20, 10")
    a("s_mul_i32 s15, s20, %d" % (D * 1024))
    a("s_mov_b32 s16, 0")
    a("s_mov_b32 s17, 0")
    a("L_loop:")
    a("s_add_u32 s18, s15, s16")
    a("s_mov_b32 m0, s18")
    a("s_add_u32 s16, s16, 1024")
    a("s_cmp_eq_u32 s16, %d" % (D * 1024))
    a("s_cselect_b32 s16, 0, s16")
    a("buffer_load_dwordx4 v2, s[8:11], s14 offen lds%s" % (" nt" if nt else ""))
    a("s_add_u32 s14, s14, 4096")
    a("s_waitcnt vmcnt(%d)" % (D - 1))
    a("s_add_u32 s17, s17, 1")
    a("s_cmp_lt_u32 s17, %d" % npieces)
    a("s_cbranch_scc1 L_loop")
    a("s_waitcnt vmcnt(0)")
    a("s_memrealtime s[26:27]")
    a("s_memtime s[30:31]")
    a("s_waitcnt lgkmcnt(0)")
    a("s_cmp_lg_u32 s20, 0"); a("s_cbranch_scc1 L_end")
    a("s_mov_b32 s8, s6"); a("s_mov_b32 s9, s7"); a("s_mov_b32 s10, %d" % (nwg * 32)); a("s_mov_b32 s11, 0x20000")
    a("v_mov_b32 v4, s24"); a("v_mov_b32 v5, s25"); a("v_mov_b32 v6, s26"); a("v_mov_b32 v7, s27")
    a("v_mov_b32 v8, s28"); a("v_mov_b32 v9, s29"); a("v_mov_b32 v10, s30"); a("v_mov_b32 v11, s31")
    a("s_lshl_b32 s3, s2, 5"); a("v_mov_b32 v3, s3")
    a("v_cmp_eq_u32 vcc, 0, v0"); a("s_and_saveexec_b64 s[20:21], vcc")
    a("s_cbranch_execz L_end")
    a("buffer_store_dwordx4 v[4:7], v3, s[8:11], 0 offen")
    a("buffer_store_dwordx4 v[8:11], v3, s[8:11], 0 offen offset:16")
    a("s_waitcnt vmcnt(0)")
    a("L_end:\ns_endpgm")
    a('.section .rodata,"a"\n.p2align 6\n.amdhsa_kernel bs_kernel')
    a(" .amdhsa_next_free_vgpr 32\n .amdhsa_next_free_sgpr 48\n .amdhsa_accum_offset 32\n .amdhsa_group_segment_fixed_size 0")
    a(" .amdhsa_kernarg_size 16\n .amdhsa_user_sgpr_count 2\n .amdhsa_user_sgpr_kernarg_segment_ptr 1\n .amdhsa_system_sgpr_workgroup_id_x 1\n.end_amdhsa_kernel")
    return "\n".join(s) + "\n"

if __name__ == "__main__":
    import rt, numpy as np, struct
    from rt import cl
    NWG = 256
    big = rt.Buf(256 * (1 << 20) + (1 << 20))
    flush = rt.Buf(600 << 20)
    out = rt.Buf(NWG * 32)
    rt.memset(big, 1); rt.sync()
    for NB in (1 << 20, 1 << 19, 1 << 18):
      for nt in (0, 1):
        for D in (8, 16, 24, 32, 40):
            p = "_bs.s"
            open(p, "w").write(gen(D, NB, nt))
            asm, co = rt.compile_s(p, "bs_kernel", 2)
            k = cl.AsmKernel(co, "bs_kernel")
            ka = struct.pack("<2Q", big.ptr, out.ptr)
            res = []
            for mode in ("cold", "warm"):
                ts = []; clk = []
                for it in range(5):
                    if mode == "cold":
                        rt.memset(flush, it); rt.sync()
                    k.launch((NWG, 1, 1), (256, 1, 1), ka, 163840); rt.sync()
                    o = out.to_numpy(np.uint64, (NWG, 4))
                    t = (o[:, 1].max() - o[:, 0].min()) / 100.0
                    ts.append(t)
                    clk.append(np.median((o[:, 3] - o[:, 2]) / ((o[:, 1] - o[:, 0]) * 10.0)))
                t = np.median(ts)
                res.append("%s %.1fus %.2fTB/s clk %.2f" % (mode, t, NWG * NB / t / 1e6, np.median(clk)))
            print("NB=%dK nt=%d D=%d (%dKB/CU):" % (NB >> 10, nt, D, D * 4), " | ".join(res), flush=True)
            k.unload()
```
